```python
import torch

def _softmax(x, axis=-1):
    return torch.softmax(x, dim=axis)
def _gelu(x):
    return torch.nn.functional.gelu(x, approximate="tanh")
def _silu(x):
    return torch.nn.functional.silu(x)
def _sigmoid(x):
    return torch.sigmoid(x)
def _layernorm(x, axis=-1, eps=1e-5):
    m = x.mean(dim=axis, keepdim=True)
    v = x.var(dim=axis, keepdim=True, unbiased=False)
    return (x - m) / torch.sqrt(v + eps)
def _scatter_add(tgt, idx, src, axis=0):
    return tgt.clone().index_add_(axis, idx, src)
def _segment_sum(src, seg, n):
    out = torch.zeros((n,) + src.shape[1:], dtype=src.dtype)
    return out.index_add_(0, seg, src)
def _pad(x, pw):
    flat = tuple(v for pair in reversed(pw) for v in pair)
    return torch.nn.functional.pad(x, flat)

kernel_name = 'standalone__mha_softmax__near_ridge'

def setup_inputs():

    _w = (lambda a: (lambda t: t.to(torch.bfloat16) if t.is_floating_point() else t)(torch.as_tensor(a)))
    B, H, Sq, Sk, D = 8, 32, 240, 2048, 128
    return {
        "q": _w((lambda *s: torch.randn(*s, dtype=torch.bfloat16) * 0.8)(B, H, Sq, D)),
        "k": _w((lambda *s: torch.randn(*s, dtype=torch.bfloat16) * 0.8)(B, H, Sk, D)),
        "v": _w((lambda *s: torch.randn(*s, dtype=torch.bfloat16) * 0.05)(B, H, Sk, D)),
    }

def reference(q, k, v):
    scale = q.shape[-1] ** -0.5
    scores = torch.einsum("bhqd,bhkd->bhqk", q, k) * scale
    p = _softmax(scores, axis=-1)
    return torch.einsum("bhqk,bhkd->bhqd", p, v)
```

```python
import re

TRANS = ("v_exp_f32", "v_log_f32", "v_rcp_f32", "v_rsq_f32", "v_sqrt_f32", "v_sin_f32", "v_cos_f32")


def regs_of(op):
    op = op.strip()
    op = op.lstrip("-")
    if op.startswith("abs(") or op.startswith("|"):
        op = op.replace("abs(", "").replace(")", "").replace("|", "")
    m = re.fullmatch(r"([vas])(\d+)", op)
    if m:
        return [(m.group(1), int(m.group(2)))]
    m = re.fullmatch(r"([vas])\[(\d+):(\d+)\]", op)
    if m:
        return [(m.group(1), i) for i in range(int(m.group(2)), int(m.group(3)) + 1)]
    if op == "vcc":
        return [("s", "vcc")]
    if op == "m0":
        return [("s", "m0")]
    if op == "exec":
        return [("s", "exec")]
    return []


class Ins:
    def __init__(self, text):
        self.text = text
        t = text.split(";")[0].strip()
        self.label = t.endswith(":")
        self.rd, self.wr = [], []
        self.kind = "other"
        self.mn = ""
        self.states = 1
        if self.label or not t or t.startswith("."):
            self.states = 0
            self.kind = "none"
            return
        parts = t.split(None, 1)
        mn = self.mn = parts[0]
        rest = parts[1] if len(parts) > 1 else ""
        ops = [o.strip() for o in rest.split(",")]
        if ops:
            ops[-1] = ops[-1].split()[0] if ops[-1] else ""
        self.ops = ops
        R = lambda i: regs_of(ops[i]) if i < len(ops) else []
        allr = lambda a: [r for i in range(a, len(ops)) for r in R(i)]
        if mn.startswith("v_mfma"):
            self.kind = "mfma"
            self.wr = R(0)
            self.A, self.B, self.C = R(1), R(2), R(3)
            self.rd = self.A + self.B + self.C
            self.passes = 8 if "32x32x16" in mn else (4 if "16x16x32" in mn else 2)
        elif mn.startswith("v_"):
            self.kind = "valu"
            self.trans = any(mn.startswith(x) for x in TRANS)
            if mn.startswith("v_permlane32_swap") or mn.startswith("v_permlane16_swap"):
                self.wr = R(0) + R(1)
                self.rd = R(0) + R(1)
            elif mn.startswith("v_cmp"):
                self.wr = R(0)
                self.rd = allr(1)
            elif mn.startswith("v_fmac") or mn.startswith("v_dot2c"):
                self.wr = R(0)
                self.rd = allr(0)
            elif mn.startswith("v_add_co") or mn.startswith("v_addc_co"):
                self.wr = R(0) + R(1)
                self.rd = allr(2)
            else:
                self.wr = R(0)
                self.rd = allr(1)
        elif mn.startswith("ds_read"):
            self.kind = "ds"
            self.wr = R(0)
            self.rd = R(1)
        elif mn.startswith("ds_write"):
            self.kind = "ds"
            self.rd = allr(0)
        elif mn.startswith("buffer_load") or mn.startswith("global_load"):
            self.kind = "vmem"
            if " lds" in t or "_lds_" in mn:
                self.lds = True
                self.rd = allr(0) + [("s", "m0")]
            else:
                self.lds = False
                self.wr = R(0)
                self.rd = allr(1)
        elif mn.startswith("buffer_store") or mn.startswith("global_store"):
            self.kind = "vmem"
            self.store = True
            self.rd = allr(0)
            self.data = R(0) if mn.startswith("buffer") else R(1)
        elif mn.startswith("s_load") or mn.startswith("s_memtime") or mn.startswith("s_memrealtime"):
            self.kind = "smem"
            self.wr = R(0)
            self.rd = allr(1)
        elif mn == "s_nop":
            self.kind = "nop"
            self.states = int(ops[0], 0) + 1
        elif mn == "s_waitcnt":
            self.kind = "wait"
            m = re.search(r"vmcnt\((\d+)\)", t)
            self.vm = int(m.group(1)) if m else None
            m = re.search(r"lgkmcnt\((\d+)\)", t)
            self.lgkm = int(m.group(1)) if m else None
        elif mn.startswith("s_cmp"):
            self.kind = "salu"
            self.rd = allr(0)
        elif mn.startswith("s_cbranch") or mn in ("s_branch", "s_barrier", "s_endpgm", "s_setprio", "s_sleep"):
            self.kind = "ctl"
        elif mn.startswith("s_"):
            self.kind = "salu"
            self.wr = R(0)
            self.rd = allr(1)


def check_linear(ins, name="", lg_q=None, vm_q=None):
    errs = 0
    seq = [i for i in ins if i.kind != "none"]

    def err(msg, a, b):
        nonlocal errs
        errs += 1
        print("HAZARD[%s] %s\n    prod: %s\n    cons: %s" % (name, msg, a.text.strip(), b.text.strip()))

    n = len(seq)
    for i, p in enumerate(seq):
        dist = 0
        pw = set(p.wr)
        for j in range(i + 1, min(n, i + 40)):
            c = seq[j]
            need = 0
            cr, cw = set(c.rd), set(c.wr)
            vec_pw = {r for r in pw if r[0] in "va"}
            s_pw = {r for r in pw if r[0] == "s"}
            if p.kind == "valu":
                if c.kind == "mfma" and vec_pw & cr:
                    need = max(need, 2)
                if c.kind == "valu" and p.trans and not c.trans and vec_pw & (cr):
                    need = max(need, 1)
                if c.kind == "valu" and c.mn.startswith("v_permlane") and vec_pw & cr:
                    need = max(need, 2)
                if c.kind == "valu" and (c.mn.startswith("v_readfirstlane") or c.mn.startswith("v_readlane")) and vec_pw & cr:
                    need = max(need, 1)
                if c.kind == "valu" and "dpp" in c.text and vec_pw & cr:
                    need = max(need, 2)
                if c.kind == "vmem" and s_pw & cr:
                    need = max(need, 5)
                if c.kind == "valu" and s_pw & cr:
                    need = max(need, 2)
            if p.kind == "mfma":
                tab = {8: (10, 12, 7), 4: (6, 8, 3), 2: (4, 5, 1)}[p.passes]
                if c.kind == "mfma":
                    if pw & set(c.C):
                        if not (set(c.C) == pw and c.passes == p.passes):
                            need = max(need, tab[0])
                        elif p.passes == 2:
                            need = max(need, 2)
                    if pw & (set(c.A) | set(c.B)):
                        need = max(need, tab[1])
                    if pw & cw and not (pw & set(c.C)):
                        pass
                elif c.kind in ("valu", "ds", "vmem"):
                    if pw & (cr | cw):
                        need = max(need, tab[1])
                    if c.kind == "valu" and set(p.C) & cw:
                        need = max(need, tab[2])
            if p.kind == "salu" and ("s", "m0") in pw and c.kind == "vmem" and getattr(c, "lds", False):
                need = max(need, 1)
            if p.kind == "vmem" and getattr(p, "store", False) and len(p.data) >= 3:
                if set(p.data) & cw:
                    need = max(need, 2 if c.kind == "valu" else 1)
            if need > dist:
                err("need %d states, have %d" % (need, dist), p, c)
            dist += c.states
            if dist > 24:
                break
    lg = list(lg_q or [])
    vm = list(vm_q or [])
    for c in seq:
        touched = set(c.rd) | set(c.wr)
        for q, nm in ((lg, "lgkm"), (vm, "vm")):
            for p in q:
                if set(p.wr) & touched:
                    err("use of %s result before waitcnt" % nm, p, c)
        if c.kind == "wait":
            if c.lgkm is not None:
                if any(p.kind == "smem" for p in lg) and c.lgkm != 0:
                    pass
                else:
                    while len(lg) > c.lgkm:
                        lg.pop(0)
            if c.vm is not None:
                while len(vm) > c.vm:
                    vm.pop(0)
        if c.kind in ("ds", "smem"):
            lg.append(c)
            if len(lg) > 15 and c.kind == "ds":
                pass
        if c.kind == "vmem":
            vm.append(c)
            if len(vm) > 63:
                print("WARN[%s] more than 63 vmem outstanding" % name)
    return errs


class Asm:
    def __init__(self):
        self.ins = []

    def __call__(self, text):
        for line in text.split("\n"):
            if line.strip():
                self.ins.append(Ins(line.strip()))

    def text(self):
        out = []
        for i in self.ins:
            out.append(i.text if (i.label or i.text.startswith(".")) else "    " + i.text)
        return "\n".join(out) + "\n"
```

```python
import sys, math, struct, argparse
from asmlib import Asm, Ins, check_linear

NAME = "standalone__mha_softmax__near_ridge_kernel"


def f2u(x):
    return struct.unpack("<I", struct.pack("<f", x))[0]


class Opt:
    prescale = True
    pol = "nt"
    qpol = ""
    opol = ""
    compute = True
    dma = True
    stamps = False
    slow = True
    dmagaps = (3, 11, 19, 27, 35, 43, 51, 59)
    OFF = 3
    barrier = True
    stagger = 0
    valu = True
    dsrd = True
    safeoob = True


NS = 5
TILE = 16384
VB = NS * TILE
SC = math.log2(math.e) / math.sqrt(128.0)

def O(dt, qb): return (dt * 2 + qb) * 16
def S(b, qb): return 128 + b * 32 + qb * 16
def NEGM(qb): return 192 + qb * 16
VKR = 224
VVR = 232
VKD = 236
VVD = 240
VL = 241
VNM = 243
VT = 245
def AQ(qb, ks): return (qb * 8 + ks) * 4
def AK(ks): return 64 + ks * 4
def AV(i): return 96 + i * 4
SK = 4
SV = 8
SQ = 12
SO = 16
sW = 20
sW4K = 21
sKoff = 22
sVoff = 23
sDst = 24
sRd = 25
sWrap = 26
sDelta = 27
sC = 36
sI = 37
sT = 38
sWS = 40
sST = 44


def vr(b, n): return "v[%d:%d]" % (b, b + n - 1)
def ar(b, n): return "a[%d:%d]" % (b, b + n - 1)
def sr(b, n): return "s[%d:%d]" % (b, b + n - 1)


def elem(e):
    t, qb, i = e >> 4, (e >> 3) & 1, e & 7
    return qb, 8 * t + i


def sm_ops(o, b, e):
    ops = []
    if not o.valu:
        return ops
    if not o.prescale and 0 <= e + 1 < 32:
        qb, r = elem(e + 1)
        ops.append("v_fma_f32 v%d, v%d, s%d, v%d" % (S(b, qb) + r, S(b, qb) + r, sC, VNM + qb))
    if 0 <= e < 32:
        qb, r = elem(e)
        ops.insert(0, "v_exp_f32 v%d, v%d" % (S(b, qb) + r, S(b, qb) + r))
    if 1 <= e <= 32:
        qb, r = elem(e - 1)
        ops.append("v_add_f32 v%d, v%d, v%d" % (VL + qb, VL + qb, S(b, qb) + r))
        if r & 1:
            t = r >> 3
            k = (r & 7) >> 1
            ops.append("v_cvt_pk_bf16_f32 v%d, v%d, v%d" % (S(b, qb) + 8 * t + k, S(b, qb) + r - 1, S(b, qb) + r))
    return ops


def qk_mfma(o, b, g, zero=False):
    ks, qb = g >> 1, g & 1
    d = vr(S(b, qb), 16)
    if ks == 0:
        c = "0" if (zero or not o.prescale) else vr(NEGM(qb), 16)
    else:
        c = d
    return "v_mfma_f32_32x32x16_bf16 %s, %s, %s, %s" % (d, ar(AK(ks), 4), ar(AQ(qb, ks), 4), c)


def pv_mfma(b, g):
    i, qb = g >> 1, g & 1
    t, dt = i >> 2, i & 3
    d = vr(O(dt, qb), 16)
    return "v_mfma_f32_32x32x16_bf16 %s, %s, %s, %s" % (d, ar(AV(i), 4), vr(S(b, qb) + 8 * t, 4), d)


def k_read(ks, u):
    return "ds_read_b128 %s, v%d offset:%d" % (ar(AK(ks), 4), VKR + ks, u * 8192)


def v_read(g, u):
    i, up = g >> 1, g & 1
    t, dt = i >> 2, i & 3
    return "ds_read_b64_tr_b16 %s, v%d offset:%d" % (ar(AV(i) + 2 * up, 2), VVR + dt, (32 * u + 16 * t + 8 * up) * 256)


def dma(o, which, j, soff):
    if which == "K":
        return "buffer_load_dwordx4 v%d, %s, %s offen offset:%d %s lds" % (VKD + j, sr(SK, 4), soff, j * 1024, o.pol)
    return "buffer_load_dwordx4 v%d, %s, %s offen offset:%d %s lds" % (VVD, sr(SV, 4), soff, j * 1024, o.pol)


def stamp(a, o, n):
    if o.stamps:
        a("s_memrealtime %s" % sr(sST + 4 * n, 2))
        a("s_memtime %s" % sr(sST + 4 * n + 2, 2))
        a("s_waitcnt lgkmcnt(0)")


def slot(o, par, extra):
    cur, nxt = par, 1 - par
    L = []
    OFF = o.OFF
    for g in range(32):
        pre = []
        if g == 0 and par == 1:
            pre.append("s_waitcnt lgkmcnt(0)")
        if g == 16:
            pre.append("s_waitcnt lgkmcnt(8)")
        if g == 24:
            pre.append("s_waitcnt lgkmcnt(8)")
        if g < 16:
            m = qk_mfma(o, nxt, g)
            sm = sm_ops(o, cur, 16 - OFF + g)
            ds = [v_read(g, par)]
        else:
            gb = g - 16
            m = pv_mfma(cur, gb)
            if gb < OFF:
                sm = sm_ops(o, cur, 32 - OFF + gb)
                if gb == OFF - 1 and not o.prescale:
                    sm += sm_ops(o, nxt, -1)
            elif gb == OFF:
                sm = sm_ops(o, nxt, 0) + sm_ops(o, cur, 32)
            else:
                sm = sm_ops(o, nxt, gb - OFF)
            ds = [k_read(gb, par)] if gb < 8 else []
        if not o.dsrd:
            ds = []
            pre = []
        if o.compute:
            L += pre
            L.append(m)
            L += sm[:1] + ds + sm[1:]
        L += extra.get(g, [])
    return L


def gen(o):
    a = Asm()
    a("%s:" % NAME)
    a("s_cmp_ge_u32 s2, 256")
    a("s_cbranch_scc1 L_end")
    a("s_load_dwordx4 s[28:31], s[0:1], 0")
    a("s_load_dwordx4 s[32:35], s[0:1], 16")
    if o.stamps:
        a("s_load_dwordx2 %s, s[0:1], 40" % sr(sWS, 2))
        a("s_memrealtime %s" % sr(sST, 2))
        a("s_memtime %s" % sr(sST + 2, 2))
    T = VT
    a("v_lshrrev_b32 v%d, 6, v0" % (T + 4))
    a("v_and_b32 v%d, 63, v0" % T)
    a("v_readfirstlane_b32 s%d, v%d" % (sW, T + 4))
    a("v_and_b32 v%d, 15, v%d" % (T + 1, T))
    a("v_lshrrev_b32 v%d, 4, v%d" % (T + 2, T))
    a("v_lshrrev_b32 v%d, 5, v%d" % (T + 3, T))
    a("s_lshl_b32 s%d, s%d, 12" % (sW4K, sW))
    a("v_xor_b32 v%d, v%d, v%d" % (T + 4, T + 1, T + 2))
    a("v_lshlrev_b32 v%d, 4, v%d" % (T + 4, T + 4))
    a("v_lshl_add_u32 v%d, v%d, 8, s%d" % (T + 5, T + 2, sW4K))
    a("v_add_u32 v%d, v%d, v%d" % (VKD, T + 4, T + 5))
    for j in range(1, 4):
        a("v_xor_b32 v%d, %d, v%d" % (VKD + j, 64 * j, VKD))
    a("v_lshlrev_b32 v%d, 2, v%d" % (T + 4, T + 2))
    a("v_xor_b32 v%d, v%d, v%d" % (T + 4, T + 4, T + 1))
    a("v_lshl_add_u32 v%d, v%d, 4, v%d" % (VVD, T + 4, T + 5))
    a("s_mul_i32 s%d, s%d, 12288" % (sT, sW))
    for rg in range(4):
        for j in range(4):
            if rg == 0:
                a("v_add_u32 v%d, s%d, v%d" % (128 + j, sT, VKD + j))
            else:
                a("v_add_u32 v%d, %d, v%d" % (128 + rg * 4 + j, 4096 * rg, 128 + j))
    a("s_mul_i32 s%d, s2, 61440" % sT)
    a("s_lshl_b32 s%d, s2, 19" % (sT + 1))
    a("s_waitcnt lgkmcnt(0)")
    a("s_add_u32 s%d, s28, s%d" % (SQ, sT))
    a("s_addc_u32 s%d, s29, 0" % (SQ + 1))
    a("s_mov_b32 s%d, 61440" % (SQ + 2))
    a("s_mov_b32 s%d, 0x20000" % (SQ + 3))
    a("s_add_u32 s%d, s30, s%d" % (SK, sT + 1))
    a("s_addc_u32 s%d, s31, 0" % (SK + 1))
    a("s_mov_b32 s%d, 0x80000" % (SK + 2))
    a("s_mov_b32 s%d, 0x20000" % (SK + 3))
    qreg = [3 * TILE, 4 * TILE, VB, VB + 4 * TILE]
    for rg in range(4):
        a("s_add_u32 m0, s%d, %d" % (sW4K, qreg[rg]))
        if rg == 0:
            a("s_nop 0")
        else:
            a("s_nop 0")
        for j in range(4):
            a("buffer_load_dwordx4 v%d, %s, 0 offen offset:%d %s lds" % (128 + rg * 4 + j, sr(SQ, 4), j * 1024, o.qpol))
    a("s_add_u32 s%d, s32, s%d" % (SV, sT + 1))
    a("s_addc_u32 s%d, s33, 0" % (SV + 1))
    a("s_mov_b32 s%d, 0x80000" % (SV + 2))
    a("s_mov_b32 s%d, 0x20000" % (SV + 3))
    a("s_add_u32 s%d, s34, s%d" % (SO, sT))
    a("s_addc_u32 s%d, s35, 0" % (SO + 1))
    a("s_mov_b32 s%d, 61440" % (SO + 2))
    a("s_mov_b32 s%d, 0x20000" % (SO + 3))

    def group(which, tile):
        slotn = tile % NS if which == "K" else (tile + 1) % NS
        base = slotn * TILE + (0 if which == "K" else VB)
        a("s_add_u32 m0, s%d, %d" % (sW4K, base))
        a("s_mov_b32 s%d, %d" % (sT, tile * TILE))
        for j in range(4):
            a(dma(o, which, j, "s%d" % sT))

    group("K", 0); group("K", 1); group("V", 0); group("K", 2); group("V", 1); group("V", 2)
    a("v_and_b32 v%d, 31, v%d" % (T + 4, T))
    a("v_lshlrev_b32 v%d, 8, v%d" % (T + 4, T + 4))
    a("v_xor_b32 v%d, v%d, v%d" % (T + 5, T + 3, T + 1))
    a("v_lshl_add_u32 v%d, v%d, 4, v%d" % (VKR, T + 5, T + 4))
    for ks in range(1, 8):
        a("v_xor_b32 v%d, %d, v%d" % (VKR + ks, 32 * ks, VKR))
    a("v_bfe_u32 v%d, v%d, 2, 2" % (T + 4, T))
    a("v_lshl_add_u32 v%d, v%d, 2, v%d" % (T + 5, T + 3, T + 4))
    a("v_lshlrev_b32 v%d, 8, v%d" % (T + 5, T + 5))
    a("v_lshl_add_u32 v%d, v%d, 6, v%d" % (T + 5, T + 4, T + 5))
    a("v_bfe_u32 v%d, v%d, 4, 1" % (T + 6, T))
    a("v_lshl_add_u32 v%d, v%d, 5, v%d" % (T + 5, T + 6, T + 5))
    a("v_and_b32 v%d, 3, v%d" % (T + 7, T))
    a("v_lshl_add_u32 v%d, v%d, 3, v%d" % (T + 5, T + 7, T + 5))
    for dt in range(4):
        a("v_xor_b32 v%d, %d, v%d" % (VVR + dt, 64 * dt, T + 5))
        a("v_add_u32 v%d, %d, v%d" % (VVR + dt, VB + TILE, VVR + dt))
    a("v_mul_u32_u24 v%d, 12288, v%d" % (T + 8, T + 6))
    a("v_mul_u32_u24 v%d, 61440, v%d" % (T + 9, T + 6))
    a("s_add_u32 s%d, s%d, %d" % (sT, sW4K, 3 * TILE))
    a("s_add_u32 s%d, s%d, %d" % (sT + 1, sW4K, VB))
    a("v_add_u32 v%d, s%d, v%d" % (T + 8, sT, T + 8))
    a("v_add_u32 v%d, s%d, v%d" % (T + 9, sT + 1, T + 9))
    for qb in range(2):
        for ks in range(8):
            a("v_add_u32 v%d, v%d, v%d" % (192 + qb * 8 + ks, VKR + ks, T + 8 + qb))
    for r in range(128):
        a("v_mov_b32 v%d, 0" % r)
    a("v_mov_b32 v%d, 0" % VL)
    a("v_mov_b32 v%d, 0" % (VL + 1))
    a("s_mov_b32 s%d, 0x%08x" % (sC, f2u(SC)))
    a("s_mov_b32 s%d, 0x%08x" % (sC + 1, f2u(SC)))
    a("s_mov_b32 s%d, %d" % (sKoff, NS * TILE))
    a("s_mov_b32 s%d, %d" % (sVoff, (NS - 1) * TILE))
    a("s_mov_b32 s%d, s%d" % (sDst, sW4K))
    a("s_add_u32 s%d, s%d, %d" % (sRd, sW4K, TILE))
    a("s_add_u32 s%d, s%d, %d" % (sWrap, sW4K, VB))
    for qb in range(2):
        a("s_waitcnt vmcnt(%d)" % (32 if qb == 0 else 24))
        for ks in range(8):
            dst = vr(128 + (qb * 8 + ks) * 4, 4) if o.prescale else ar(AQ(qb, ks), 4)
            a("ds_read_b128 %s, v%d" % (dst, 192 + qb * 8 + ks))
    stamp(a, o, 1)
    if o.prescale:
        a("s_mov_b32 s%d, 0xffff0000" % sT)
        for n in range(64):
            if n == 0:
                a("s_waitcnt lgkmcnt(8)")
            if n == 32:
                a("s_waitcnt lgkmcnt(0)")
                group("K", 3); group("K", 4); group("V", 3)
                a("s_mov_b32 s%d, 0xffff0000" % sT)
            src = 128 + n
            t0 = 208 + (n & 3) * 2
            a("v_lshlrev_b32 v%d, 16, v%d" % (t0, src))
            a("v_and_b32 v%d, s%d, v%d" % (t0 + 1, sT, src))
            a("v_pk_mul_f32 %s, %s, %s" % (vr(t0, 2), vr(t0, 2), sr(sC, 2)))
            a("v_cvt_pk_bf16_f32 v%d, v%d, v%d" % (t0, t0, t0 + 1))
            a("v_accvgpr_write_b32 a%d, v%d" % (n, t0))
    else:
        a("s_waitcnt lgkmcnt(0)")
        group("K", 3); group("K", 4); group("V", 3)
    a("s_mov_b32 s%d, 0" % sI)
    a("s_waitcnt vmcnt(32)")
    a("s_barrier")
    if o.compute:
        for ks in range(8):
            a(k_read(ks, 0))
        for g in range(16):
            if g % 2 == 0:
                a("s_waitcnt lgkmcnt(%d)" % (7 - g // 2))
            a(qk_mfma(o, 0, g, zero=True))
        for ks in range(8):
            a(k_read(ks, 1))
        for ks in range(8):
            a("v_add_u32 v%d, %d, v%d" % (VKR + ks, TILE, VKR + ks))
        for qb in range(2):
            s = S(0, qb)
            a("v_max3_f32 v%d, v%d, v%d, v%d" % (T + 4 + qb, s, s + 1, s + 2))
            for i in range(3, 15, 2):
                a("v_max3_f32 v%d, v%d, v%d, v%d" % (T + 4 + qb, T + 4 + qb, s + i, s + i + 1))
            a("v_max_f32 v%d, v%d, v%d" % (T + 4 + qb, T + 4 + qb, s + 15))
        a("v_mov_b32 v%d, v%d" % (T + 6, T + 4))
        a("v_mov_b32 v%d, v%d" % (T + 7, T + 5))
        a("s_nop 1")
        a("v_permlane32_swap_b32 v%d, v%d" % (T + 4, T + 6))
        a("v_permlane32_swap_b32 v%d, v%d" % (T + 5, T + 7))
        a("v_max_f32 v%d, v%d, v%d" % (T + 4, T + 4, T + 6))
        a("v_max_f32 v%d, v%d, v%d" % (T + 5, T + 5, T + 7))
        if o.prescale:
            for qb in range(2):
                for r in range(16):
                    a("v_sub_f32 v%d, v%d, v%d" % (S(0, qb) + r, S(0, qb) + r, T + 4 + qb))
            for qb in range(2):
                for r in range(16):
                    a("v_sub_f32 v%d, 0, v%d" % (NEGM(qb) + r, T + 4 + qb))
        else:
            for qb in range(2):
                a("v_mul_f32 v%d, s%d, v%d" % (VNM + qb, sC, T + 4 + qb))
                a("v_sub_f32 v%d, 0, v%d" % (VNM + qb, VNM + qb))
            for x in sm_ops(o, 0, -1):
                a(x)
        for e in range(0, 16 - o.OFF):
            ops = sm_ops(o, 0, e)
            for x in ops:
                a(x)
            if len(ops) < 2:
                a("s_nop 0")
    stamp(a, o, 2)
    pro_end = len(a.ins)
    ex = [dict(), dict()]

    def add(gap, line):
        ex[gap // 32].setdefault(gap % 32, []).append(line)

    if o.dma:
        gs = o.dmagaps
        add(gs[0] - 1, "s_mov_b32 m0, s%d" % sDst)
        for j in range(4):
            add(gs[j], dma(o, "K", j, "s%d" % sKoff))
        add(gs[4] - 1, "s_add_u32 m0, s%d, %d" % (sDst, VB))
        for j in range(4):
            add(gs[4 + j], dma(o, "V", j, "s%d" % sVoff))
        add(gs[7], "s_mov_b32 s%d, s%d" % (sVoff, sKoff))
        add(gs[7] + 1, "s_add_u32 s%d, s%d, %d" % (sKoff, sKoff, TILE))
        if o.safeoob:
            add(gs[7] + 1, "s_mov_b32 s%d, s%d" % (SV + 2, SK + 2))
            add(gs[7] + 2, "s_cmp_lt_u32 s%d, 0x80000" % sKoff)
            add(gs[7] + 2, "s_cselect_b32 s%d, 0x80000, 0" % (SK + 2))
    add(44, "s_add_u32 s%d, s%d, %d" % (sT, sRd, TILE))
    add(45, "s_cmp_eq_u32 s%d, s%d" % (sT, sWrap))
    add(45, "s_cselect_b32 s%d, s%d, s%d" % (sT, sW4K, sT))
    add(46, "s_sub_u32 s%d, s%d, s%d" % (sDelta, sT, sRd))
    for dt in range(4):
        add(48 + 2 * dt + 1, "v_add_u32 v%d, s%d, v%d" % (VVR + dt, sDelta, VVR + dt))
    for ks in range(8):
        add(56 + ks, "v_add_u32 v%d, s%d, v%d" % (VKR + ks, sDelta, VKR + ks))
    last = max(o.dmagaps[4], 46) + 1
    add(max(last, 60), "s_mov_b32 s%d, s%d" % (sDst, sRd))
    add(max(last, 60) + 1, "s_mov_b32 s%d, s%d" % (sRd, sT))
    add(29, "s_add_u32 s%d, s%d, 1" % (sI, sI))
    add(30, "s_cmp_eq_u32 s%d, 32" % sI)
    a(".p2align 6")
    a("L_loop:")
    loop_beg = len(a.ins)
    if o.dma:
        a("s_waitcnt vmcnt(24) lgkmcnt(0)")
    else:
        a("s_waitcnt lgkmcnt(0)")
    if o.barrier:
        a("s_barrier")
    for x in slot(o, 0, ex[0]):
        a(x)
    a("s_cbranch_scc1 L_tail")
    mid = len(a.ins)
    for x in slot(o, 1, ex[1]):
        a(x)
    a("s_branch L_loop")
    loop_end = len(a.ins)
    a("L_tail:")
    stamp(a, o, 3)
    if o.compute:
        for g in range(16):
            a(v_read(g, 1))
        for e in range(16 - o.OFF, 17):
            for x in sm_ops(o, 1, e):
                a(x)
        a("s_waitcnt lgkmcnt(8)")
        e = 17
        for g in range(8):
            a(pv_mfma(1, g))
            for _ in range(2):
                if e <= 32:
                    for x in sm_ops(o, 1, e):
                        a(x)
                    e += 1
        assert e == 33
        a("s_waitcnt lgkmcnt(0)")
        post = ["v_mov_b32 v%d, v%d" % (T + 4, VL), "v_mov_b32 v%d, v%d" % (T + 5, VL + 1), "s_nop 0",
                "v_permlane32_swap_b32 v%d, v%d" % (VL, T + 4), "v_permlane32_swap_b32 v%d, v%d" % (VL + 1, T + 5),
                "v_add_f32 v%d, v%d, v%d" % (VL, VL, T + 4), "v_add_f32 v%d, v%d, v%d" % (VL + 1, VL + 1, T + 5),
                "v_max_f32 v%d, v%d, v%d" % (T + 6, VL, VL + 1),
                "v_rcp_f32 v%d, v%d" % (T + 4, VL), "v_rcp_f32 v%d, v%d" % (T + 8, VL + 1),
                "v_and_b32 v%d, 31, v%d" % (T + 1, T), "v_lshlrev_b32 v%d, 8, v%d" % (T + 1, T + 1),
                "v_lshl_add_u32 v%d, v%d, 4, v%d" % (T + 1, T + 3, T + 1),
                "s_lshl_b32 s%d, s%d, 14" % (sT, sW),
                "v_add_u32 v%d, s%d, v%d" % (T + 1, sT, T + 1),
                "v_add_u32 v%d, 8192, v%d" % (T + 2, T + 1),
                "v_mov_b32 v%d, v%d" % (T + 5, T + 4), "v_mov_b32 v%d, v%d" % (T + 9, T + 8)]
        assert T % 2 == 1
        for g in range(8, 16):
            a(pv_mfma(1, g))
            for _ in range(3):
                if post:
                    a(post.pop(0))
        assert not post
        RC = [T + 5, T + 9]
        a("s_nop 7")
        for dt in range(4):
            for qb in range(2):
                ob = O(dt, qb)
                for r in range(0, 16, 2):
                    a("v_pk_mul_f32 %s, %s, %s op_sel_hi:[1,0]" % (vr(ob + r, 2), vr(ob + r, 2), vr(RC[qb], 2)))
                for r in range(0, 16, 2):
                    a("v_cvt_pk_bf16_f32 v%d, v%d, v%d" % (ob + r // 2, ob + r, ob + r + 1))
                a("s_nop 0")
                for jj in range(2):
                    a("v_permlane32_swap_b32 v%d, v%d" % (ob + 4 * jj, ob + 4 * jj + 2))
                    a("v_permlane32_swap_b32 v%d, v%d" % (ob + 4 * jj + 1, ob + 4 * jj + 3))
                for jj in range(2):
                    a("buffer_store_dwordx4 %s, v%d, %s, 0 offen offset:%d %s" % (vr(ob + 4 * jj, 4), T + 1 + qb, sr(SO, 4), dt * 64 + jj * 32, o.opol))
    stamp(a, o, 4)
    if o.stamps:
        a("s_waitcnt vmcnt(0)")
        stamp(a, o, 5)
        n = 6
        a("s_lshl_b32 s%d, s2, 2" % sT)
        a("s_add_u32 s%d, s%d, s%d" % (sT, sT, sW))
        a("s_mul_i32 s%d, s%d, %d" % (sT, sT, n * 16))
        a("s_add_u32 s%d, s%d, s%d" % (sWS, sWS, sT))
        a("s_addc_u32 s%d, s%d, 0" % (sWS + 1, sWS + 1))
        a("v_mov_b32 v0, 0")
        for i in range(n):
            for kx in range(4):
                a("v_mov_b32 v%d, s%d" % (4 + kx, sST + 4 * i + kx))
            a("global_store_dwordx4 v0, v[4:7], %s offset:%d" % (sr(sWS, 2), i * 16))
            a("s_nop 1")
    a("L_end:")
    a("s_endpgm")
    ins = a.ins
    errs = check_linear(ins[:pro_end] + ins[loop_beg:loop_end] + ins[loop_beg:loop_end] + ins[loop_beg:mid] + ins[loop_end:], "main")
    hdr = """; bf16 attention forward, one workgroup (4 waves x 64 query rows) per (batch, head).
; @launch grid=(256,1,1) block=(256,1,1) lds=163840
.amdgcn_target "amdgcn-amd-amdhsa--gfx950"
.text
.globl %s
.p2align 8
.type %s,@function
""" % (NAME, NAME)
    ftr = """.section .rodata,"a"
.p2align 6
.amdhsa_kernel %s
  .amdhsa_next_free_vgpr 384
  .amdhsa_next_free_sgpr 96
  .amdhsa_accum_offset 256
  .amdhsa_group_segment_fixed_size 0
  .amdhsa_kernarg_size 48
  .amdhsa_user_sgpr_count 2
  .amdhsa_user_sgpr_kernarg_segment_ptr 1
  .amdhsa_system_sgpr_workgroup_id_x 1
.end_amdhsa_kernel
""" % NAME
    return hdr + a.text() + ftr, errs


if __name__ == "__main__":
    out = sys.argv[1]
    o = Opt()
    for kv in sys.argv[2:]:
        k, v = kv.split("=", 1)
        assert hasattr(o, k), k
        cur = getattr(o, k)
        if isinstance(cur, bool):
            v = v in ("1", "True", "true")
        elif isinstance(cur, int):
            v = int(v)
        elif isinstance(cur, tuple):
            v = tuple(int(x) for x in v.split(","))
        else:
            v = v.replace("+", " ")
        setattr(o, k, v)
    txt, errs = gen(o)
    open(out, "w").write(txt)
    print("wrote", out, "hazards:", errs)
```

```python
import sys, math, struct, argparse
from asmlib import Asm, Ins, check_linear

NAME = "standalone__mha_softmax__near_ridge_kernel"


def f2u(x):
    return struct.unpack("<I", struct.pack("<f", x))[0]


class Opt:
    prescale = True
    pol = "nt"
    qpol = ""
    opol = ""
    compute = True
    dma = True
    stamps = False
    slow = True
    dmagaps = (3, 11, 19, 27, 35, 43, 51, 59)
    OFF = 3
    barrier = True
    stagger = 0
    valu = True
    dsrd = True
    safeoob = True
    stampset = 'all'


NS = 5
TILE = 16384
VB = NS * TILE
SC = math.log2(math.e) / math.sqrt(128.0)

def O(dt, qb): return (dt * 2 + qb) * 16
def S(b, qb): return 128 + b * 32 + qb * 16
def NEGM(qb): return 192 + qb * 16
VKR = 224
VVR = 232
VKD = 236
VVD = 240
VL = 241
VNM = 243
VT = 245
def AQ(qb, ks): return (qb * 8 + ks) * 4
def AK(ks): return 64 + ks * 4
def AV(i): return 96 + i * 4
SK = 4
SV = 8
SQ = 12
SO = 16
sW = 20
sW4K = 21
sKoff = 22
sVoff = 23
sDst = 24
sRd = 25
sWrap = 26
sDelta = 27
sC = 36
sI = 37
sT = 38
sWS = 40
sST = 44


def vr(b, n): return "v[%d:%d]" % (b, b + n - 1)
def ar(b, n): return "a[%d:%d]" % (b, b + n - 1)
def sr(b, n): return "s[%d:%d]" % (b, b + n - 1)


def elem(e):
    t, qb, i = e >> 4, (e >> 3) & 1, e & 7
    return qb, 8 * t + i


def sm_ops(o, b, e):
    ops = []
    if not o.valu:
        return ops
    if not o.prescale and 0 <= e + 1 < 32:
        qb, r = elem(e + 1)
        ops.append("v_fma_f32 v%d, v%d, s%d, v%d" % (S(b, qb) + r, S(b, qb) + r, sC, VNM + qb))
    if 0 <= e < 32:
        qb, r = elem(e)
        ops.insert(0, "v_exp_f32 v%d, v%d" % (S(b, qb) + r, S(b, qb) + r))
    if 1 <= e <= 32:
        qb, r = elem(e - 1)
        ops.append("v_add_f32 v%d, v%d, v%d" % (VL + qb, VL + qb, S(b, qb) + r))
        if r & 1:
            t = r >> 3
            k = (r & 7) >> 1
            ops.append("v_cvt_pk_bf16_f32 v%d, v%d, v%d" % (S(b, qb) + 8 * t + k, S(b, qb) + r - 1, S(b, qb) + r))
    return ops


def qk_mfma(o, b, g, zero=False):
    ks, qb = g >> 1, g & 1
    d = vr(S(b, qb), 16)
    if ks == 0:
        c = "0" if (zero or not o.prescale) else vr(NEGM(qb), 16)
    else:
        c = d
    return "v_mfma_f32_32x32x16_bf16 %s, %s, %s, %s" % (d, ar(AK(ks), 4), ar(AQ(qb, ks), 4), c)


def pv_mfma(b, g):
    i, qb = g >> 1, g & 1
    t, dt = i >> 2, i & 3
    d = vr(O(dt, qb), 16)
    return "v_mfma_f32_32x32x16_bf16 %s, %s, %s, %s" % (d, ar(AV(i), 4), vr(S(b, qb) + 8 * t, 4), d)


def k_read(ks, u):
    return "ds_read_b128 %s, v%d offset:%d" % (ar(AK(ks), 4), VKR + ks, u * 8192)


def v_read(g, u):
    i, up = g >> 1, g & 1
    t, dt = i >> 2, i & 3
    return "ds_read_b64_tr_b16 %s, v%d offset:%d" % (ar(AV(i) + 2 * up, 2), VVR + dt, (32 * u + 16 * t + 8 * up) * 256)


def dma(o, which, j, soff):
    if which == "K":
        return "buffer_load_dwordx4 v%d, %s, %s offen offset:%d %s lds" % (VKD + j, sr(SK, 4), soff, j * 1024, o.pol)
    return "buffer_load_dwordx4 v%d, %s, %s offen offset:%d %s lds" % (VVD, sr(SV, 4), soff, j * 1024, o.pol)


STN = [0]
def stamp(a, o, name):
    if o.stamps and (name in o.stampset.split(",") or o.stampset == "all"):
        STN[0] += 1
        n = STN[0]
        assert sST + 4 * n + 3 < 100
        print("stamp", n, name)
        a("s_memrealtime %s" % sr(sST + 4 * n, 2))
        a("s_memtime %s" % sr(sST + 4 * n + 2, 2))
        a("s_waitcnt lgkmcnt(0)")


def slot(o, par, extra):
    cur, nxt = par, 1 - par
    L = []
    OFF = o.OFF
    for g in range(32):
        pre = []
        if g == 0 and par == 1:
            pre.append("s_waitcnt lgkmcnt(0)")
        if g == 16:
            pre.append("s_waitcnt lgkmcnt(8)")
        if g == 24:
            pre.append("s_waitcnt lgkmcnt(8)")
        if g < 16:
            m = qk_mfma(o, nxt, g)
            sm = sm_ops(o, cur, 16 - OFF + g)
            ds = [v_read(g, par)]
        else:
            gb = g - 16
            m = pv_mfma(cur, gb)
            if gb < OFF:
                sm = sm_ops(o, cur, 32 - OFF + gb)
                if gb == OFF - 1 and not o.prescale:
                    sm += sm_ops(o, nxt, -1)
            elif gb == OFF:
                sm = sm_ops(o, nxt, 0) + sm_ops(o, cur, 32)
            else:
                sm = sm_ops(o, nxt, gb - OFF)
            ds = [k_read(gb, par)] if gb < 8 else []
        if not o.dsrd:
            ds = []
            pre = []
        if o.compute:
            L += pre
            L.append(m)
            L += sm[:1] + ds + sm[1:]
        L += extra.get(g, [])
    return L


def gen(o):
    a = Asm()
    a("%s:" % NAME)
    a("s_cmp_ge_u32 s2, 256")
    a("s_cbranch_scc1 L_end")
    a("s_load_dwordx4 s[28:31], s[0:1], 0")
    a("s_load_dwordx4 s[32:35], s[0:1], 16")
    if o.stamps:
        a("s_load_dwordx2 %s, s[0:1], 40" % sr(sWS, 2))
        a("s_memrealtime %s" % sr(sST, 2))
        a("s_memtime %s" % sr(sST + 2, 2))
    T = VT
    a("v_lshrrev_b32 v%d, 6, v0" % (T + 4))
    a("v_and_b32 v%d, 63, v0" % T)
    a("v_readfirstlane_b32 s%d, v%d" % (sW, T + 4))
    a("v_and_b32 v%d, 15, v%d" % (T + 1, T))
    a("v_lshrrev_b32 v%d, 4, v%d" % (T + 2, T))
    a("v_lshrrev_b32 v%d, 5, v%d" % (T + 3, T))
    a("s_lshl_b32 s%d, s%d, 12" % (sW4K, sW))
    a("v_xor_b32 v%d, v%d, v%d" % (T + 4, T + 1, T + 2))
    a("v_lshlrev_b32 v%d, 4, v%d" % (T + 4, T + 4))
    a("v_lshl_add_u32 v%d, v%d, 8, s%d" % (T + 5, T + 2, sW4K))
    a("v_add_u32 v%d, v%d, v%d" % (VKD, T + 4, T + 5))
    for j in range(1, 4):
        a("v_xor_b32 v%d, %d, v%d" % (VKD + j, 64 * j, VKD))
    a("v_lshlrev_b32 v%d, 2, v%d" % (T + 4, T + 2))
    a("v_xor_b32 v%d, v%d, v%d" % (T + 4, T + 4, T + 1))
    a("v_lshl_add_u32 v%d, v%d, 4, v%d" % (VVD, T + 4, T + 5))
    a("s_mul_i32 s%d, s%d, 12288" % (sT, sW))
    for rg in range(4):
        for j in range(4):
            if rg == 0:
                a("v_add_u32 v%d, s%d, v%d" % (128 + j, sT, VKD + j))
            else:
                a("v_add_u32 v%d, %d, v%d" % (128 + rg * 4 + j, 4096 * rg, 128 + j))
    a("s_mul_i32 s%d, s2, 61440" % sT)
    a("s_lshl_b32 s%d, s2, 19" % (sT + 1))
    a("s_waitcnt lgkmcnt(0)")
    stamp(a, o, "karg")
    a("s_add_u32 s%d, s28, s%d" % (SQ, sT))
    a("s_addc_u32 s%d, s29, 0" % (SQ + 1))
    a("s_mov_b32 s%d, 61440" % (SQ + 2))
    a("s_mov_b32 s%d, 0x20000" % (SQ + 3))
    a("s_add_u32 s%d, s30, s%d" % (SK, sT + 1))
    a("s_addc_u32 s%d, s31, 0" % (SK + 1))
    a("s_mov_b32 s%d, 0x80000" % (SK + 2))
    a("s_mov_b32 s%d, 0x20000" % (SK + 3))
    qreg = [3 * TILE, 4 * TILE, VB, VB + 4 * TILE]
    for rg in range(4):
        a("s_add_u32 m0, s%d, %d" % (sW4K, qreg[rg]))
        if rg == 0:
            a("s_nop 0")
        else:
            a("s_nop 0")
        for j in range(4):
            a("buffer_load_dwordx4 v%d, %s, 0 offen offset:%d %s lds" % (128 + rg * 4 + j, sr(SQ, 4), j * 1024, o.qpol))
    stamp(a, o, "qdma")
    a("s_add_u32 s%d, s32, s%d" % (SV, sT + 1))
    a("s_addc_u32 s%d, s33, 0" % (SV + 1))
    a("s_mov_b32 s%d, 0x80000" % (SV + 2))
    a("s_mov_b32 s%d, 0x20000" % (SV + 3))
    a("s_add_u32 s%d, s34, s%d" % (SO, sT))
    a("s_addc_u32 s%d, s35, 0" % (SO + 1))
    a("s_mov_b32 s%d, 61440" % (SO + 2))
    a("s_mov_b32 s%d, 0x20000" % (SO + 3))

    def group(which, tile):
        slotn = tile % NS if which == "K" else (tile + 1) % NS
        base = slotn * TILE + (0 if which == "K" else VB)
        a("s_add_u32 m0, s%d, %d" % (sW4K, base))
        a("s_mov_b32 s%d, %d" % (sT, tile * TILE))
        for j in range(4):
            a(dma(o, which, j, "s%d" % sT))

    group("K", 0); group("K", 1); group("V", 0); group("K", 2); group("V", 1); group("V", 2)
    stamp(a, o, "kvdma")
    a("v_and_b32 v%d, 31, v%d" % (T + 4, T))
    a("v_lshlrev_b32 v%d, 8, v%d" % (T + 4, T + 4))
    a("v_xor_b32 v%d, v%d, v%d" % (T + 5, T + 3, T + 1))
    a("v_lshl_add_u32 v%d, v%d, 4, v%d" % (VKR, T + 5, T + 4))
    for ks in range(1, 8):
        a("v_xor_b32 v%d, %d, v%d" % (VKR + ks, 32 * ks, VKR))
    a("v_bfe_u32 v%d, v%d, 2, 2" % (T + 4, T))
    a("v_lshl_add_u32 v%d, v%d, 2, v%d" % (T + 5, T + 3, T + 4))
    a("v_lshlrev_b32 v%d, 8, v%d" % (T + 5, T + 5))
    a("v_lshl_add_u32 v%d, v%d, 6, v%d" % (T + 5, T + 4, T + 5))
    a("v_bfe_u32 v%d, v%d, 4, 1" % (T + 6, T))
    a("v_lshl_add_u32 v%d, v%d, 5, v%d" % (T + 5, T + 6, T + 5))
    a("v_and_b32 v%d, 3, v%d" % (T + 7, T))
    a("v_lshl_add_u32 v%d, v%d, 3, v%d" % (T + 5, T + 7, T + 5))
    for dt in range(4):
        a("v_xor_b32 v%d, %d, v%d" % (VVR + dt, 64 * dt, T + 5))
        a("v_add_u32 v%d, %d, v%d" % (VVR + dt, VB + TILE, VVR + dt))
    a("v_mul_u32_u24 v%d, 12288, v%d" % (T + 8, T + 6))
    a("v_mul_u32_u24 v%d, 61440, v%d" % (T + 9, T + 6))
    a("s_add_u32 s%d, s%d, %d" % (sT, sW4K, 3 * TILE))
    a("s_add_u32 s%d, s%d, %d" % (sT + 1, sW4K, VB))
    a("v_add_u32 v%d, s%d, v%d" % (T + 8, sT, T + 8))
    a("v_add_u32 v%d, s%d, v%d" % (T + 9, sT + 1, T + 9))
    for qb in range(2):
        for ks in range(8):
            a("v_add_u32 v%d, v%d, v%d" % (192 + qb * 8 + ks, VKR + ks, T + 8 + qb))
    for r in range(128):
        a("v_mov_b32 v%d, 0" % r)
    a("v_mov_b32 v%d, 0" % VL)
    a("v_mov_b32 v%d, 0" % (VL + 1))
    a("s_mov_b32 s%d, 0x%08x" % (sC, f2u(SC)))
    a("s_mov_b32 s%d, 0x%08x" % (sC + 1, f2u(SC)))
    a("s_mov_b32 s%d, %d" % (sKoff, NS * TILE))
    a("s_mov_b32 s%d, %d" % (sVoff, (NS - 1) * TILE))
    a("s_mov_b32 s%d, s%d" % (sDst, sW4K))
    a("s_add_u32 s%d, s%d, %d" % (sRd, sW4K, TILE))
    a("s_add_u32 s%d, s%d, %d" % (sWrap, sW4K, VB))
    stamp(a, o, "preq")
    for qb in range(2):
        a("s_waitcnt vmcnt(%d)" % (32 if qb == 0 else 24))
        stamp(a, o, "q%d" % qb)
        for ks in range(8):
            dst = vr(128 + (qb * 8 + ks) * 4, 4) if o.prescale else ar(AQ(qb, ks), 4)
            a("ds_read_b128 %s, v%d" % (dst, 192 + qb * 8 + ks))
    if o.prescale:
        a("s_mov_b32 s%d, 0xffff0000" % sT)
        for n in range(64):
            if n == 0:
                a("s_waitcnt lgkmcnt(8)")
            if n == 32:
                a("s_waitcnt lgkmcnt(0)")
                group("K", 3); group("K", 4); group("V", 3)
                a("s_mov_b32 s%d, 0xffff0000" % sT)
            src = 128 + n
            t0 = 208 + (n & 3) * 2
            a("v_lshlrev_b32 v%d, 16, v%d" % (t0, src))
            a("v_and_b32 v%d, s%d, v%d" % (t0 + 1, sT, src))
            a("v_pk_mul_f32 %s, %s, %s" % (vr(t0, 2), vr(t0, 2), sr(sC, 2)))
            a("v_cvt_pk_bf16_f32 v%d, v%d, v%d" % (t0, t0, t0 + 1))
            a("v_accvgpr_write_b32 a%d, v%d" % (n, t0))
    else:
        a("s_waitcnt lgkmcnt(0)")
        group("K", 3); group("K", 4); group("V", 3)
    a("s_mov_b32 s%d, 0" % sI)
    stamp(a, o, "qscaled")
    a("s_waitcnt vmcnt(32)")
    a("s_barrier")
    stamp(a, o, "k0")
    if o.compute:
        for ks in range(8):
            a(k_read(ks, 0))
        for g in range(16):
            if g % 2 == 0:
                a("s_waitcnt lgkmcnt(%d)" % (7 - g // 2))
            a(qk_mfma(o, 0, g, zero=True))
        for ks in range(8):
            a(k_read(ks, 1))
        for ks in range(8):
            a("v_add_u32 v%d, %d, v%d" % (VKR + ks, TILE, VKR + ks))
        for qb in range(2):
            s = S(0, qb)
            a("v_max3_f32 v%d, v%d, v%d, v%d" % (T + 4 + qb, s, s + 1, s + 2))
            for i in range(3, 15, 2):
                a("v_max3_f32 v%d, v%d, v%d, v%d" % (T + 4 + qb, T + 4 + qb, s + i, s + i + 1))
            a("v_max_f32 v%d, v%d, v%d" % (T + 4 + qb, T + 4 + qb, s + 15))
        a("v_mov_b32 v%d, v%d" % (T + 6, T + 4))
        a("v_mov_b32 v%d, v%d" % (T + 7, T + 5))
        a("s_nop 1")
        a("v_permlane32_swap_b32 v%d, v%d" % (T + 4, T + 6))
        a("v_permlane32_swap_b32 v%d, v%d" % (T + 5, T + 7))
        a("v_max_f32 v%d, v%d, v%d" % (T + 4, T + 4, T + 6))
        a("v_max_f32 v%d, v%d, v%d" % (T + 5, T + 5, T + 7))
        if o.prescale:
            for qb in range(2):
                for r in range(16):
                    a("v_sub_f32 v%d, v%d, v%d" % (S(0, qb) + r, S(0, qb) + r, T + 4 + qb))
            for qb in range(2):
                for r in range(16):
                    a("v_sub_f32 v%d, 0, v%d" % (NEGM(qb) + r, T + 4 + qb))
        else:
            for qb in range(2):
                a("v_mul_f32 v%d, s%d, v%d" % (VNM + qb, sC, T + 4 + qb))
                a("v_sub_f32 v%d, 0, v%d" % (VNM + qb, VNM + qb))
            for x in sm_ops(o, 0, -1):
                a(x)
        for e in range(0, 16 - o.OFF):
            ops = sm_ops(o, 0, e)
            for x in ops:
                a(x)
            if len(ops) < 2:
                a("s_nop 0")
    stamp(a, o, "loop")
    pro_end = len(a.ins)
    ex = [dict(), dict()]

    def add(gap, line):
        ex[gap // 32].setdefault(gap % 32, []).append(line)

    if o.dma:
        gs = o.dmagaps
        add(gs[0] - 1, "s_mov_b32 m0, s%d" % sDst)
        if not o.compute:
            add(gs[0] - 1, "s_nop 0")
        for j in range(4):
            add(gs[j], dma(o, "K", j, "s%d" % sKoff))
        add(gs[4] - 1, "s_add_u32 m0, s%d, %d" % (sDst, VB))
        if not o.compute:
            add(gs[4] - 1, "s_nop 0")
        for j in range(4):
            add(gs[4 + j], dma(o, "V", j, "s%d" % sVoff))
        add(gs[7], "s_mov_b32 s%d, s%d" % (sVoff, sKoff))
        add(gs[7] + 1, "s_add_u32 s%d, s%d, %d" % (sKoff, sKoff, TILE))
        if o.safeoob:
            add(gs[7] + 1, "s_mov_b32 s%d, s%d" % (SV + 2, SK + 2))
            add(gs[7] + 2, "s_cmp_lt_u32 s%d, 0x80000" % sKoff)
            add(gs[7] + 2, "s_cselect_b32 s%d, 0x80000, 0" % (SK + 2))
    add(44, "s_add_u32 s%d, s%d, %d" % (sT, sRd, TILE))
    add(45, "s_cmp_eq_u32 s%d, s%d" % (sT, sWrap))
    add(45, "s_cselect_b32 s%d, s%d, s%d" % (sT, sW4K, sT))
    add(46, "s_sub_u32 s%d, s%d, s%d" % (sDelta, sT, sRd))
    for dt in range(4):
        add(48 + 2 * dt + 1, "v_add_u32 v%d, s%d, v%d" % (VVR + dt, sDelta, VVR + dt))
    for ks in range(8):
        add(56 + ks, "v_add_u32 v%d, s%d, v%d" % (VKR + ks, sDelta, VKR + ks))
    last = max(o.dmagaps[4], 46) + 1
    add(max(last, 60), "s_mov_b32 s%d, s%d" % (sDst, sRd))
    add(max(last, 60) + 1, "s_mov_b32 s%d, s%d" % (sRd, sT))
    add(29, "s_add_u32 s%d, s%d, 1" % (sI, sI))
    add(30, "s_cmp_eq_u32 s%d, 32" % sI)
    a(".p2align 6")
    a("L_loop:")
    loop_beg = len(a.ins)
    if o.dma:
        a("s_waitcnt vmcnt(24) lgkmcnt(0)")
    else:
        a("s_waitcnt lgkmcnt(0)")
    if o.barrier:
        a("s_barrier")
    for x in slot(o, 0, ex[0]):
        a(x)
    a("s_cbranch_scc1 L_tail")
    mid = len(a.ins)
    for x in slot(o, 1, ex[1]):
        a(x)
    a("s_branch L_loop")
    loop_end = len(a.ins)
    a("L_tail:")
    stamp(a, o, "tail")
    if o.compute:
        for g in range(16):
            a(v_read(g, 1))
        for e in range(16 - o.OFF, 17):
            for x in sm_ops(o, 1, e):
                a(x)
        a("s_waitcnt lgkmcnt(8)")
        e = 17
        for g in range(8):
            a(pv_mfma(1, g))
            for _ in range(2):
                if e <= 32:
                    for x in sm_ops(o, 1, e):
                        a(x)
                    e += 1
        assert e == 33
        a("s_waitcnt lgkmcnt(0)")
        post = ["v_mov_b32 v%d, v%d" % (T + 4, VL), "v_mov_b32 v%d, v%d" % (T + 5, VL + 1), "s_nop 0",
                "v_permlane32_swap_b32 v%d, v%d" % (VL, T + 4), "v_permlane32_swap_b32 v%d, v%d" % (VL + 1, T + 5),
                "v_add_f32 v%d, v%d, v%d" % (VL, VL, T + 4), "v_add_f32 v%d, v%d, v%d" % (VL + 1, VL + 1, T + 5),
                "v_max_f32 v%d, v%d, v%d" % (T + 6, VL, VL + 1),
                "v_rcp_f32 v%d, v%d" % (T + 4, VL), "v_rcp_f32 v%d, v%d" % (T + 8, VL + 1),
                "v_and_b32 v%d, 31, v%d" % (T + 1, T), "v_lshlrev_b32 v%d, 8, v%d" % (T + 1, T + 1),
                "v_lshl_add_u32 v%d, v%d, 4, v%d" % (T + 1, T + 3, T + 1),
                "s_lshl_b32 s%d, s%d, 14" % (sT, sW),
                "v_add_u32 v%d, s%d, v%d" % (T + 1, sT, T + 1),
                "v_add_u32 v%d, 8192, v%d" % (T + 2, T + 1),
                "v_mov_b32 v%d, v%d" % (T + 5, T + 4), "v_mov_b32 v%d, v%d" % (T + 9, T + 8)]
        assert T % 2 == 1
        for g in range(8, 16):
            a(pv_mfma(1, g))
            for _ in range(3):
                if post:
                    a(post.pop(0))
        assert not post
        RC = [T + 5, T + 9]
        a("s_nop 7")
        for dt in range(4):
            for qb in range(2):
                ob = O(dt, qb)
                for r in range(0, 16, 2):
                    a("v_pk_mul_f32 %s, %s, %s op_sel_hi:[1,0]" % (vr(ob + r, 2), vr(ob + r, 2), vr(RC[qb], 2)))
                for r in range(0, 16, 2):
                    a("v_cvt_pk_bf16_f32 v%d, v%d, v%d" % (ob + r // 2, ob + r, ob + r + 1))
                a("s_nop 0")
                for jj in range(2):
                    a("v_permlane32_swap_b32 v%d, v%d" % (ob + 4 * jj, ob + 4 * jj + 2))
                    a("v_permlane32_swap_b32 v%d, v%d" % (ob + 4 * jj + 1, ob + 4 * jj + 3))
                for jj in range(2):
                    a("buffer_store_dwordx4 %s, v%d, %s, 0 offen offset:%d %s" % (vr(ob + 4 * jj, 4), T + 1 + qb, sr(SO, 4), dt * 64 + jj * 32, o.opol))
    stamp(a, o, "stored")
    if o.stamps:
        a("s_waitcnt vmcnt(0)")
        stamp(a, o, "end")
        n = STN[0] + 1
        print('nstamps(u64) =', 2 * n)
        a("s_lshl_b32 s%d, s2, 2" % sT)
        a("s_add_u32 s%d, s%d, s%d" % (sT, sT, sW))
        a("s_mul_i32 s%d, s%d, %d" % (sT, sT, n * 16))
        a("s_add_u32 s%d, s%d, s%d" % (sWS, sWS, sT))
        a("s_addc_u32 s%d, s%d, 0" % (sWS + 1, sWS + 1))
        a("v_mov_b32 v0, 0")
        for i in range(n):
            for kx in range(4):
                a("v_mov_b32 v%d, s%d" % (4 + kx, sST + 4 * i + kx))
            a("global_store_dwordx4 v0, v[4:7], %s offset:%d" % (sr(sWS, 2), i * 16))
            a("s_nop 1")
    a("L_end:")
    a("s_endpgm")
    ins = a.ins
    errs = check_linear(ins[:pro_end] + ins[loop_beg:loop_end] + ins[loop_beg:loop_end] + ins[loop_beg:mid] + ins[loop_end:], "main")
    hdr = """; bf16 attention forward, one workgroup (4 waves x 64 query rows) per (batch, head).
; @launch grid=(256,1,1) block=(256,1,1) lds=163840
.amdgcn_target "amdgcn-amd-amdhsa--gfx950"
.text
.globl %s
.p2align 8
.type %s,@function
""" % (NAME, NAME)
    ftr = """.section .rodata,"a"
.p2align 6
.amdhsa_kernel %s
  .amdhsa_next_free_vgpr 384
  .amdhsa_next_free_sgpr 102
  .amdhsa_accum_offset 256
  .amdhsa_group_segment_fixed_size 0
  .amdhsa_kernarg_size 48
  .amdhsa_user_sgpr_count 2
  .amdhsa_user_sgpr_kernarg_segment_ptr 1
  .amdhsa_system_sgpr_workgroup_id_x 1
.end_amdhsa_kernel
""" % NAME
    return hdr + a.text() + ftr, errs


if __name__ == "__main__":
    out = sys.argv[1]
    o = Opt()
    for kv in sys.argv[2:]:
        k, v = kv.split("=", 1)
        assert hasattr(o, k), k
        cur = getattr(o, k)
        if isinstance(cur, bool):
            v = v in ("1", "True", "true")
        elif isinstance(cur, int):
            v = int(v)
        elif isinstance(cur, tuple):
            v = tuple(int(x) for x in v.split(","))
        else:
            v = v.replace("+", " ")
        setattr(o, k, v)
    txt, errs = gen(o)
    open(out, "w").write(txt)
    print("wrote", out, "hazards:", errs)
```
